```python
import torch

def _softmax(x, axis=-1):
    return torch.softmax(x, dim=axis)
def _gelu(x):
    return torch.nn.functional.gelu(x, approximate="tanh")
def _silu(x):
    return torch.nn.functional.silu(x)
def _sigmoid(x):
    return torch.sigmoid(x)
def _layernorm(x, axis=-1, eps=1e-5):
    m = x.mean(dim=axis, keepdim=True)
    v = x.var(dim=axis, keepdim=True, unbiased=False)
    return (x - m) / torch.sqrt(v + eps)
def _scatter_add(tgt, idx, src, axis=0):
    return tgt.clone().index_add_(axis, idx, src)
def _segment_sum(src, seg, n):
    out = torch.zeros((n,) + src.shape[1:], dtype=src.dtype)
    return out.index_add_(0, seg, src)
def _pad(x, pw):
    flat = tuple(v for pair in reversed(pw) for v in pair)
    return torch.nn.functional.pad(x, flat)

kernel_name = 'concat_heads__mha_block__spectral_fnet__prompt'

def setup_inputs():

    _w = (lambda a: (lambda t: t.to(torch.bfloat16) if t.is_floating_point() else t)(torch.as_tensor(a)))
    def _A_setup():
        B, S, D, H = 1, 2048, 512, 32
        return {
            "x": _w((lambda *s: torch.randn(*s, dtype=torch.bfloat16) * 0.2)(B, S, D)),
            "wqkv": _w((lambda *s: torch.randn(*s, dtype=torch.bfloat16) * 0.8)(D, 3 * D)),
            "wo": _w((lambda *s: torch.randn(*s, dtype=torch.bfloat16) * 0.2)(D, D)),
        }
    _A_in = _A_setup()

    def _B_setup():
        B, S, D = 1, 2048, 512
        ns = torch.arange(S)[:, None] * torch.arange(S)[None, :]
        nd = torch.arange(D)[:, None] * torch.arange(D)[None, :]
        Ws_re = torch.cos(-2.0 * torch.pi * ns / S).to(float)
        Ws_im = torch.sin(-2.0 * torch.pi * ns / S).to(float)
        Wd_re = torch.cos(-2.0 * torch.pi * nd / D).to(float)
        Wd_im = torch.sin(-2.0 * torch.pi * nd / D).to(float)
        return {
            "x": _w((lambda *s: torch.randn(*s, dtype=torch.bfloat16) * 0.05)(B, S, D)),
            "dft_seq_re": _w(Ws_re),
            "dft_seq_im": _w(Ws_im),
            "dft_hid_re": _w(Wd_re),
            "dft_hid_im": _w(Wd_im),
        }
    _B_in = _B_setup()

    return {
        "A_x": _A_in["x"],
        "A_wqkv": _A_in["wqkv"],
        "A_wo": _A_in["wo"],
        "B_x": _B_in["x"],
        "B_dft_seq_re": _B_in["dft_seq_re"],
        "B_dft_seq_im": _B_in["dft_seq_im"],
        "B_dft_hid_re": _B_in["dft_hid_re"],
        "B_dft_hid_im": _B_in["dft_hid_im"],
    }

def reference(A_x, A_wqkv, A_wo, B_x, B_dft_seq_re, B_dft_seq_im, B_dft_hid_re, B_dft_hid_im):
    def _A_ref(x, wqkv, wo):
        B, S, D = x.shape
        H = 32
        Dh = D // H
        qkv = (lambda x, *d: x.permute(*d))((x @ wqkv).reshape(B, S, 3, H, Dh), 2, 0, 3, 1, 4)
        q, k, v = qkv[0], qkv[1], qkv[2]
        scores = torch.einsum("bhqd,bhkd->bhqk", q, k) * (Dh ** -0.5)
        p = _softmax(scores, axis=-1)
        o = torch.einsum("bhqk,bhkd->bhqd", p, v)
        return (lambda x, *d: x.permute(*d))(o, 0, 2, 1, 3).reshape(B, S, D) @ wo

    def _B_ref(x, dft_seq_re, dft_seq_im, dft_hid_re, dft_hid_im):
        a = torch.einsum("bsd,ed->bse", x, dft_hid_re)
        b = torch.einsum("bsd,ed->bse", x, dft_hid_im)
        y = torch.einsum("ts,bse->bte", dft_seq_re, a) - torch.einsum("ts,bse->bte", dft_seq_im, b)
        return y

    a = _A_ref(A_x, A_wqkv, A_wo)
    b = _B_ref(B_x, B_dft_seq_re, B_dft_seq_im, B_dft_hid_re, B_dft_hid_im)
    return torch.concatenate([a, b], axis=-1)
```

```python
class Asm:
    def __init__(self):
        self.lines = []
        self.nlabel = 0
    def __call__(self, s, c=None):
        for ln in s.split("\n"):
            ln = ln.strip()
            if not ln: continue
            if ln.endswith(":"):
                self.lines.append(ln)
            else:
                self.lines.append("    " + ln + (f"    ; {c}" if c else ""))
    def c(self, s):
        self.lines.append(f"    ; {s}")
    def raw(self, s):
        self.lines.append(s)
    def label(self, base):
        self.nlabel += 1
        return f"L_{base}_{self.nlabel}"
    def text(self):
        return "\n".join(self.lines) + "\n"

def vr(b, n=1):
    return f"v{b}" if n == 1 else f"v[{b}:{b+n-1}]"
def sr(b, n=1):
    return f"s{b}" if n == 1 else f"s[{b}:{b+n-1}]"

class VAlloc:
    def __init__(self, start=0, limit=256):
        self.p = start; self.limit = limit; self.hi = start
    def a(self, n=1, align=1):
        if n >= 2: align = max(align, 2)
        if n >= 4: align = max(align, 4)
        self.p = (self.p + align - 1) // align * align
        r = self.p; self.p += n
        assert self.p <= self.limit, "out of vgprs"
        self.hi = max(self.hi, self.p)
        return r
    def mark(self): return self.p
    def reset(self, m): self.p = m
```

```python
import sys
from asmlib import *

NAME = "concat_heads__mha_block__spectral_fnet__prompt"
WS_Q = 0; WS_K = 2<<20; WS_V = 4<<20; WS_O = 6<<20; WS_Z = 8<<20; WS_P = 12<<20
WS_SIZE = 268435456
S_WAVE = 3
P_X, P_W, P_WO, P_BX, P_CS, P_SS, P_CD, P_SD = 4, 6, 8, 10, 12, 14, 16, 18
P_OUT, P_DBG, P_WS = 20, 22, 24
R_X, R_W, R_WO, R_BX, R_CS, R_SS, R_CD, R_SD, R_OUT, R_WS, R_T = 28, 32, 36, 40, 44, 48, 52, 56, 60, 64, 68
ST = 72
SLOT = 28672
CQ = 0x3eb8aa3b
import struct
CQ = struct.unpack('<I', struct.pack('<f', 0.25*1.4426950408889634))[0]

def srd(a, reg, ptr, size):
    a(f"s_mov_b32 s{reg}, s{ptr}")
    a(f"s_and_b32 s{reg+1}, s{ptr+1}, 0xffff")
    a(f"s_mov_b32 s{reg+2}, {size:#x}")
    a(f"s_mov_b32 s{reg+3}, 0x20000")

def prologue(a, name, need):
    a.raw(f".globl {name}\n.p2align 8\n.type {name},@function")
    a(f"{name}:")
    a(f"s_cmp_ge_u32 s2, 256")
    a(f"s_cbranch_scc1 L_{name}_exit")
    a("s_load_dwordx16 s[4:19], s[0:1], 0")
    a("s_load_dwordx4 s[20:23], s[0:1], 64")
    a("s_load_dwordx2 s[24:25], s[0:1], 80")
    a("v_lshrrev_b32 v1, 6, v0")
    a("v_and_b32 v0, 63, v0", "lane")
    a(f"v_readfirstlane_b32 s{S_WAVE}, v1")
    a("s_waitcnt lgkmcnt(0)")
    tbl = dict(X=(R_X,P_X,2097152), W=(R_W,P_W,1572864), WO=(R_WO,P_WO,524288), BX=(R_BX,P_BX,2097152),
               CS=(R_CS,P_CS,8388608), SS=(R_SS,P_SS,8388608), CD=(R_CD,P_CD,524288), SD=(R_SD,P_SD,524288),
               OUT=(R_OUT,P_OUT,4194304), WS=(R_WS,P_WS,WS_SIZE))
    for n in need:
        srd(a, *tbl[n])

def dma(a, voff, srdreg, soff, m0_s=None, m0_imm=None, flags=""):
    if m0_s is not None: a(f"s_mov_b32 m0, s{m0_s}")
    else: a(f"s_mov_b32 m0, {m0_imm:#x}")
    a("s_nop 0")
    a(f"buffer_load_dwordx4 v{voff}, s[{srdreg}:{srdreg+3}], s{soff} offen lds{flags}")

def tile_ids_AB(a):
    a("s_and_b32 s74, s2, 7")
    a("s_lshr_b32 s75, s2, 3")
    a("s_and_b32 s72, s74, 3")
    a("s_lshl_b32 s72, s72, 2")
    a("s_and_b32 s76, s75, 3")
    a("s_add_u32 s72, s72, s76", "tt")
    a("s_lshr_b32 s73, s74, 2")
    a("s_lshl_b32 s73, s73, 3")
    a("s_lshr_b32 s76, s75, 2")
    a("s_add_u32 s73, s73, s76", "hp")

def loader_AB(a, NSLOT=5):
    a.c("---- loader waves: phase A/B chunk ring")
    a(f"s_sub_u32 s74, s{S_WAVE}, 4", "lw")
    vXe, vXo, vW = 2, 3, 4
    a("v_lshrrev_b32 v5, 3, v0")
    a("v_lshlrev_b32 v2, 10, v5", "row*1024")
    a("v_and_b32 v5, 7, v0")
    a("v_lshrrev_b32 v6, 4, v0")
    a("v_xor_b32 v5, v5, v6")
    a("v_lshlrev_b32 v5, 4, v5")
    a("v_add_u32 v2, v2, v5", "vXe")
    a("v_xor_b32 v3, 64, v2", "vXo")
    a("v_lshrrev_b32 v5, 2, v0")
    a("v_mul_u32_u24 v4, 3072, v5")
    a("v_and_b32 v5, 3, v0")
    a("v_lshlrev_b32 v5, 4, v5")
    a("v_add_u32 v4, v4, v5", "vW")
    a("s_lshl_b32 s76, s72, 17")
    a("s_lshl_b32 s78, s74, 15")
    a("s_add_u32 s76, s76, s78")
    a("s_mul_i32 s77, s74, 49152")
    a("s_lshl_b32 s78, s73, 6")
    a("s_add_u32 s77, s77, s78")
    a("s_lshl_b32 s79, s74, 19")
    a("s_lshl_b32 s78, s72, 15")
    a("s_add_u32 s79, s79, s78")
    a("s_lshl_b32 s80, s73, 15")
    a("s_and_b32 s78, s74, 1")
    a("s_lshl_b32 s78, s78, 14")
    a("s_add_u32 s80, s80, s78")
    a("s_lshl_b32 s81, s74, 12")
    a("s_lshl_b32 s82, s74, 10")
    a("s_add_u32 s82, s82, 16384")
    a("s_lshl_b32 s83, s74, 11")
    a("s_add_u32 s83, s83, 16384")
    a("s_cmp_lt_u32 s74, 2")
    a(f"s_cselect_b32 s{R_T}, s{R_CD}, s{R_SD}")
    a(f"s_cselect_b32 s{R_T+1}, s{R_CD+1}, s{R_SD+1}")
    a(f"s_mov_b32 s{R_T+2}, 524288")
    a(f"s_mov_b32 s{R_T+3}, 0x20000")
    def issue(c):
        slot = (c % NSLOT) * SLOT
        n = 0
        if c < 8:
            for i in range(4):
                a(f"s_add_u32 s84, s76, {i*8192 + c*128}")
                a(f"s_add_u32 s85, s81, {slot + i*1024}")
                dma(a, vXe if i % 2 == 0 else vXo, R_X, 84, m0_s=85); n += 1
            for p in range(3):
                a(f"s_add_u32 s84, s77, {c*64*3072 + p*1024}")
                a(f"s_add_u32 s85, s82, {slot + p*4096}")
                dma(a, vW, R_W, 84, m0_s=85); n += 1
        else:
            cc = c - 8
            for i in range(4):
                a(f"s_add_u32 s84, s79, {i*8192 + cc*128}")
                a(f"s_add_u32 s85, s81, {slot + i*1024}")
                dma(a, vXe if i % 2 == 0 else vXo, R_BX, 84, m0_s=85); n += 1
            for i in range(2):
                a(f"s_add_u32 s84, s80, {i*8192 + cc*128}")
                a(f"s_add_u32 s85, s83, {slot + i*1024}")
                dma(a, vXe if i % 2 == 0 else vXo, R_T, 84, m0_s=85); n += 1
        return n
    cnt = {}
    for c in range(NSLOT): cnt[c] = issue(c)
    issued = NSLOT
    for c in range(16):
        later = sum(cnt[k] for k in range(c+1, issued))
        a(f"s_waitcnt vmcnt({later})")
        a("s_barrier")
        if c >= 1 and issued < 16:
            cnt[issued] = issue(issued); issued += 1

def compute_AB(a, NSLOT=5, st=""):
    a.c("---- compute waves: phase A")
    V = VAlloc(2)
    vXb = V.a(4); vXc = V.a(4); vWb = V.a(); vWc = V.a()
    t0, t1, t2 = V.a(), V.a(), V.a()
    acc = [V.a(16) for _ in range(3)]
    xf = [V.a(4) for _ in range(2)]
    wf = [[V.a(4) for _ in range(3)] for _ in range(2)]
    a(f"v_and_b32 v{t0}, 31, v0")
    a(f"s_lshl_b32 s74, s{S_WAVE}, 12")
    a(f"v_lshl_add_u32 v{t1}, v{t0}, 7, s74", "row*128")
    a(f"v_lshrrev_b32 v{t0}, 1, v{t0}")
    a(f"v_and_b32 v{t0}, 7, v{t0}", "f")
    a(f"v_lshrrev_b32 v{t2}, 5, v0", "h")
    a(f"v_xor_b32 v{t0}, v{t0}, v{t2}")
    a(f"v_lshl_add_u32 v{vXb}, v{t0}, 4, v{t1}")
    for kk in range(1, 4):
        a(f"v_xor_b32 v{vXb+kk}, {kk*32}, v{vXb}")
    a(f"v_lshlrev_b32 v{t1}, 9, v{t2}", "8h*64")
    a(f"v_bfe_u32 v{t0}, v0, 2, 2", "r")
    a(f"v_lshl_add_u32 v{t1}, v{t0}, 6, v{t1}")
    a(f"v_bfe_u32 v{t0}, v0, 4, 1", "nhalf")
    a(f"v_lshl_add_u32 v{t1}, v{t0}, 5, v{t1}")
    a(f"v_and_b32 v{t0}, 3, v0")
    a(f"v_lshl_add_u32 v{t1}, v{t0}, 3, v{t1}")
    a(f"v_add_u32 v{vWb}, 16384, v{t1}")
    for r in range(48): a(f"v_mov_b32 v{acc[0]+r}, 0")
    def setslot(c):
        slot = (c % NSLOT) * SLOT
        for kk in range(4): a(f"v_add_u32 v{vXc+kk}, {slot}, v{vXb+kk}")
        a(f"v_add_u32 v{vWc}, {slot}, v{vWb}")
    def reads(kk, b):
        a(f"ds_read_b128 {vr(xf[b],4)}, v{vXc+kk}")
        for p in range(3):
            a(f"ds_read_b64_tr_b16 {vr(wf[b][p],2)}, v{vWc} offset:{p*4096+kk*1024}")
            a(f"ds_read_b64_tr_b16 {vr(wf[b][p]+2,2)}, v{vWc} offset:{p*4096+kk*1024+256}")
    def mfmas(b):
        a(f"v_mfma_f32_32x32x16_bf16 {vr(acc[0],16)}, {vr(wf[b][0],4)}, {vr(xf[b],4)}, {vr(acc[0],16)}")
        a(f"v_mfma_f32_32x32x16_bf16 {vr(acc[1],16)}, {vr(wf[b][1],4)}, {vr(xf[b],4)}, {vr(acc[1],16)}")
        a(f"v_mfma_f32_32x32x16_bf16 {vr(acc[2],16)}, {vr(xf[b],4)}, {vr(wf[b][2],4)}, {vr(acc[2],16)}")
    step = 0
    setslot(0)
    a("s_barrier")
    reads(0, 0)
    for c in range(8):
        for kk in range(4):
            b = step % 2
            if kk < 3:
                reads(kk+1, 1-b)
                a("s_waitcnt lgkmcnt(7)")
                mfmas(b)
            else:
                a("s_waitcnt lgkmcnt(0)")
                if c < 7:
                    setslot(c+1)
                    a("s_barrier")
                    reads(0, 1-b)
                mfmas(b)
            step += 1
    a.c("epilogue A")
    vq, vk, vv = vXc, vXc+1, vXc+2
    a(f"v_lshlrev_b32 v{vq}, 4, v0", "lane*16 == h*512+tok*16")
    a(f"v_and_b32 v{t0}, 0x33, v0")
    a(f"v_bfe_u32 v{t1}, v0, 2, 1")
    a(f"v_lshl_or_b32 v{t0}, v{t1}, 3, v{t0}")
    a(f"v_bfe_u32 v{t1}, v0, 3, 1")
    a(f"v_lshl_or_b32 v{t0}, v{t1}, 2, v{t0}")
    a(f"v_lshlrev_b32 v{vk}, 4, v{t0}")
    a(f"v_bfe_u32 v{t0}, v0, 4, 1")
    a(f"v_lshlrev_b32 v{vv}, 16, v{t0}")
    a(f"v_lshrrev_b32 v{t0}, 5, v0")
    a(f"v_lshl_add_u32 v{vv}, v{t0}, 8, v{vv}")
    a(f"v_and_b32 v{t0}, 15, v0")
    a(f"v_lshl_add_u32 v{vv}, v{t0}, 4, v{vv}")
    a(f"s_lshl_b32 s74, s72, 2")
    a(f"s_add_u32 s74, s74, s{S_WAVE}")
    a(f"s_lshl_b32 s74, s74, 10")
    a(f"s_lshl_b32 s75, s73, 17")
    a(f"s_add_u32 s74, s74, s75")
    a(f"s_mov_b32 s76, {CQ:#x}")
    a("s_nop 4")
    pk = [wf[0][0], wf[0][1], wf[0][2], wf[1][0], wf[1][1], wf[1][2]]
    def pack(dst, src):
        for i in range(4):
            a(f"v_cvt_pk_bf16_f32 v{dst+i}, v{src+2*i}, v{src+2*i+1}")
    for r in range(16): a(f"v_mul_f32 v{acc[0]+r}, s76, v{acc[0]+r}")
    pack(pk[0], acc[1]); pack(pk[1], acc[1]+8)
    a(f"s_add_u32 s75, s74, {WS_K}")
    a(f"s_add_u32 s77, s74, {WS_K+65536}")
    a(f"buffer_store_dwordx4 {vr(pk[0],4)}, v{vk}, s[{R_WS}:{R_WS+3}], s75 offen{st}")
    a(f"buffer_store_dwordx4 {vr(pk[1],4)}, v{vk}, s[{R_WS}:{R_WS+3}], s77 offen{st}")
    pack(pk[2], acc[2]); pack(pk[3], acc[2]+8)
    a(f"s_add_u32 s75, s74, {WS_V}")
    a(f"buffer_store_dwordx4 {vr(pk[2],4)}, v{vv}, s[{R_WS}:{R_WS+3}], s75 offen{st}")
    a(f"buffer_store_dwordx4 {vr(pk[3],4)}, v{vv}, s[{R_WS}:{R_WS+3}], s75 offen offset:512{st}")
    pack(pk[4], acc[0]); pack(pk[5], acc[0]+8)
    a(f"s_add_u32 s75, s74, {WS_Q}")
    a(f"s_add_u32 s77, s74, {WS_Q+65536}")
    a(f"buffer_store_dwordx4 {vr(pk[4],4)}, v{vq}, s[{R_WS}:{R_WS+3}], s75 offen{st}")
    a(f"buffer_store_dwordx4 {vr(pk[5],4)}, v{vq}, s[{R_WS}:{R_WS+3}], s77 offen{st}")

    a.c("---- compute waves: phase B")
    V = VAlloc(V.p)
    vAb = V.a(2); vBb = V.a(2); vAc = V.a(2); vBc = V.a(2)
    accB = V.a(32)
    af = [[V.a(4) for _ in range(4)] for _ in range(2)]
    bfr = [[V.a(4) for _ in range(2)] for _ in range(2)]
    u0, u1, u2 = V.a(), V.a(), V.a()
    a(f"s_and_b32 s74, s{S_WAVE}, 1", "sh")
    a(f"s_lshr_b32 s75, s{S_WAVE}, 1", "eh")
    a(f"v_and_b32 v{u0}, 15, v0")
    a(f"v_lshrrev_b32 v{u1}, 1, v{u0}", "f")
    a(f"v_lshrrev_b32 v{u2}, 4, v0", "g")
    a(f"v_xor_b32 v{u1}, v{u1}, v{u2}")
    a(f"v_lshlrev_b32 v{u1}, 4, v{u1}")
    a(f"v_lshl_add_u32 v{u1}, v{u0}, 7, v{u1}", "row*128 + swz")
    a(f"s_lshl_b32 s76, s74, 11")
    a(f"s_lshl_b32 s77, s75, 11")
    a(f"s_add_u32 s77, s77, 16384")
    a(f"v_add_u32 v{vAb}, s76, v{u1}")
    a(f"v_add_u32 v{vBb}, s77, v{u1}")
    a(f"v_xor_b32 v{vAb+1}, 64, v{vAb}")
    a(f"v_xor_b32 v{vBb+1}, 64, v{vBb}")
    for r in range(32): a(f"v_mov_b32 v{accB+r}, 0")
    def setslotB(c):
        slot = (c % NSLOT) * SLOT
        for kk in range(2):
            a(f"v_add_u32 v{vAc+kk}, {slot}, v{vAb+kk}")
            a(f"v_add_u32 v{vBc+kk}, {slot}, v{vBb+kk}")
    def readsB(kk, b):
        for p in range(2): a(f"ds_read_b128 {vr(bfr[b][p],4)}, v{vBc+kk} offset:{p*4096}")
        for j in range(4): a(f"ds_read_b128 {vr(af[b][j],4)}, v{vAc+kk} offset:{j*4096}")
    def mfmasB(b):
        for j in range(4):
            for p in range(2):
                d = accB + (j*2+p)*4
                a(f"v_mfma_f32_16x16x32_bf16 {vr(d,4)}, {vr(af[b][j],4)}, {vr(bfr[b][p],4)}, {vr(d,4)}")
    setslotB(8)
    a("s_barrier")
    readsB(0, 0)
    step = 0
    for c in range(8, 16):
        for kk in range(2):
            b = step % 2
            if kk == 0:
                readsB(1, 1-b)
                a("s_waitcnt lgkmcnt(6)")
                mfmasB(b)
            else:
                a("s_waitcnt lgkmcnt(0)")
                if c < 15:
                    setslotB(c+1)
                    a("s_barrier")
                    readsB(0, 1-b)
                mfmasB(b)
            step += 1
    a.c("epilogue B")
    vz = vAc
    a(f"v_lshrrev_b32 v{u0}, 5, v0")
    a(f"v_lshlrev_b32 v{u0}, 8, v{u0}")
    a(f"v_and_b32 v{u1}, 15, v0")
    a(f"v_lshl_add_u32 v{u0}, v{u1}, 4, v{u0}")
    a(f"v_bfe_u32 v{u1}, v0, 4, 1")
    a(f"v_lshl_add_u32 v{u0}, v{u1}, 3, v{u0}")
    a(f"s_lshl_b32 s76, s74, 9")
    a(f"v_add_u32 v{vz}, s76, v{u0}")
    a(f"s_lshl_b32 s77, s73, 1")
    a(f"s_add_u32 s77, s77, s75")
    a(f"s_lshl_b32 s77, s77, 4")
    a(f"s_add_u32 s77, s77, s72")
    a(f"s_lshl_b32 s77, s77, 10")
    a(f"s_add_u32 s77, s77, {WS_Z}")
    a("s_nop 4")
    A = lambda j, i: accB + (j*2+0)*4 + i
    B = lambda j, i: accB + (j*2+1)*4 + i
    T = af[0][0]
    o = {k: T + 4*n for n, k in enumerate(["re0","ni0","re1","ni1","re2","ni2"])}
    for i in range(4):
        x0, x1, x2 = u0, u1, u2
        x3 = vBc
        a(f"v_add_f32 v{x0}, v{A(0,i)}, v{A(2,i)}")
        a(f"v_add_f32 v{x1}, v{A(1,i)}, v{A(3,i)}")
        a(f"v_add_f32 v{o['re0']+i}, v{x0}, v{x1}")
        a(f"v_sub_f32 v{o['re2']+i}, v{x0}, v{x1}")
        a(f"v_add_f32 v{x0}, v{B(0,i)}, v{B(2,i)}")
        a(f"v_add_f32 v{x1}, v{B(1,i)}, v{B(3,i)}")
        a(f"v_sub_f32 v{o['ni2']+i}, v{x1}, v{x0}", "-(Im2)")
        a(f"v_add_f32 v{x0}, v{x0}, v{x1}")
        a(f"v_sub_f32 v{o['ni0']+i}, 0, v{x0}")
        a(f"v_sub_f32 v{x0}, v{A(0,i)}, v{A(2,i)}", "da")
        a(f"v_sub_f32 v{x1}, v{B(1,i)}, v{B(3,i)}", "eb")
        a(f"v_add_f32 v{o['re1']+i}, v{x0}, v{x1}")
        a(f"v_sub_f32 v{x2}, v{A(1,i)}, v{A(3,i)}", "ea")
        a(f"v_sub_f32 v{x3}, v{B(0,i)}, v{B(2,i)}", "db")
        a(f"v_sub_f32 v{o['ni1']+i}, v{x2}, v{x3}", "-(Im1)=ea-db")
    ps, ps2 = u0, u1
    a(f"v_add_f32 v{ps}, v{o['re0']}, v{o['re0']+1}")
    a(f"v_add_f32 v{ps2}, v{o['re0']+2}, v{o['re0']+3}")
    a(f"v_add_f32 v{ps}, v{ps}, v{ps2}")
    P2 = accB
    for n, k in enumerate(["re0","ni0","re1","ni1","re2","ni2"]):
        a(f"v_cvt_pk_bf16_f32 v{P2+2*n}, v{o[k]}, v{o[k]+1}")
        a(f"v_cvt_pk_bf16_f32 v{P2+2*n+1}, v{o[k]+2}, v{o[k]+3}")
    a(f"v_mov_b32 v{ps2}, v{ps}")
    for n in range(6):
        a(f"buffer_store_dwordx2 {vr(P2+2*n,2)}, v{vz}, s[{R_WS}:{R_WS+3}], s77 offen{st}")
        if n < 5: a(f"s_add_u32 s77, s77, {32*16*1024}")
    a(f"v_permlane32_swap_b32 v{ps}, v{ps2}")
    a("s_nop 1")
    a(f"v_add_f32 v{ps}, v{ps}, v{ps2}")
    a(f"v_mov_b32 v{ps2}, v{ps}")
    a("s_nop 1")
    a(f"v_permlane16_swap_b32 v{ps}, v{ps2}")
    a("s_nop 1")
    a(f"v_add_f32 v{ps}, v{ps}, v{ps2}")
    a(f"s_lshl_b32 s76, s72, 1")
    a(f"s_add_u32 s76, s76, s74")
    a(f"s_lshl_b32 s76, s76, 11")
    a(f"s_lshl_b32 s77, s73, 7")
    a(f"s_add_u32 s76, s76, s77")
    a(f"s_lshl_b32 s77, s75, 6")
    a(f"s_add_u32 s76, s76, s77")
    a(f"s_add_u32 s76, s76, {WS_P}")
    a(f"v_lshlrev_b32 v{u2}, 2, v0")
    a("s_mov_b64 exec, 0xffff")
    a(f"buffer_store_dword v{ps}, v{u2}, s[{R_WS}:{R_WS+3}], s76 offen{st}")
    a("s_mov_b64 exec, -1")
    return V.hi

def kernel1(a):
    name = "k1_kernel"
    prologue(a, name, ["X","W","BX","CD","SD","WS"])
    tile_ids_AB(a)
    a(f"s_cmp_ge_u32 s{S_WAVE}, 4")
    a(f"s_cbranch_scc1 L_k1_loader")
    hi = compute_AB(a)
    a("s_endpgm")
    a("L_k1_loader:")
    loader_AB(a)
    a(f"L_{name}_exit:")
    a("s_endpgm")
    return name, hi, 5*SLOT

LDS_V = 65536
VT = 1040
def attention(a, ld="", st=""):
    V = VAlloc(2)
    vKa, vV0, vV1, vIdx, vL = V.a(), V.a(), V.a(), V.a(), V.a()
    t0, t1 = V.a(), V.a()
    Q = V.a(4); Kf = [V.a(4), V.a(4)]; Vf = [V.a(8), V.a(8)]
    NM = V.a(16); O = V.a(16); S = [V.a(16), V.a(16)]
    a("s_and_b32 s72, s2, 7")
    a("s_lshl_b32 s72, s72, 2")
    a("s_bfe_u32 s73, s2, 0x20003")
    a("s_add_u32 s72, s72, s73", "head")
    a("s_lshr_b32 s73, s2, 5", "qb")
    a("s_lshl_b32 s74, s72, 16", "head*65536")
    a(f"v_lshlrev_b32 v{vL}, 4, v0", "lane*16")
    a(f"s_lshl_b32 s75, s73, 3")
    a(f"s_add_u32 s75, s75, s{S_WAVE}")
    a(f"s_lshl_b32 s75, s75, 10")
    a(f"s_add_u32 s75, s75, s74", "head*65536 + tile*1024")
    a(f"s_add_u32 s76, s75, {WS_Q}")
    a(f"buffer_load_dwordx4 {vr(Q,4)}, v{vL}, s[{R_WS}:{R_WS+3}], s76 offen{ld}")
    a(f"s_lshl_b32 s77, s{S_WAVE}, 10")
    a(f"s_add_u32 s78, s74, s77", "head*65536 + w*1024")
    a(f"s_mul_i32 s79, s{S_WAVE}, {VT}")
    for i in range(8):
        a(f"s_add_u32 s80, s78, {WS_K + i*8192}")
        a(f"s_add_u32 s81, s77, {i*8192}")
        dma(a, vL, R_WS, 80, m0_s=81, flags=ld)
        a(f"s_add_u32 s80, s78, {WS_V + i*8192}")
        a(f"s_add_u32 s81, s79, {LDS_V + i*8*VT}")
        dma(a, vL, R_WS, 80, m0_s=81, flags=ld)
    a(f"v_mov_b32 v{S[0]}, 0x3f803f80")
    a(f"v_mov_b32 v{S[0]+1}, 0x3f803f80")
    a(f"v_mov_b32 v{S[0]+2}, 0x3f803f80")
    a(f"v_mov_b32 v{S[0]+3}, 0x3f803f80")
    a(f"v_mul_u32_u24 v{t0}, {VT}, v0")
    a(f"v_add_u32 v{t0}, {LDS_V+1024}, v{t0}")
    a(f"ds_write_b128 v{t0}, {vr(S[0],4)}")
    a(f"v_mov_b32 v{vIdx}, 0xdddddddd")
    a(f"v_mov_b32 v{vKa}, v{vL}")
    a(f"v_lshrrev_b32 v{t0}, 5, v0")
    a(f"v_lshlrev_b32 v{t0}, 8, v{t0}")
    a(f"v_and_b32 v{t1}, 15, v0")
    a(f"v_lshl_add_u32 v{t0}, v{t1}, 4, v{t0}")
    a(f"v_add_u32 v{t0}, {LDS_V}, v{t0}")
    a(f"v_add_u32 v{t1}, 512, v{t0}")
    a(f"v_and_b32 v{vV0}, 16, v0")
    a(f"v_cmp_eq_u32 vcc, 0, v{vV0}")
    a(f"v_mov_b32 v{vV1}, {LDS_V+1024}")
    a("s_nop 0")
    a(f"v_cndmask_b32 v{vV0}, v{vV1}, v{t0}, vcc")
    a(f"v_cndmask_b32 v{vV1}, v{vV1}, v{t1}, vcc")
    a("s_mov_b32 s82, 0", "pass flag: 0 = stand-in max, 1 = true max")
    a("s_waitcnt vmcnt(0) lgkmcnt(0)")
    a("s_barrier")
    a(f"ds_read_b128 {vr(Kf[0],4)}, v{vKa}")
    a("s_waitcnt lgkmcnt(0)")
    a(f"v_mfma_f32_32x32x16_bf16 {vr(S[0],16)}, {vr(Kf[0],4)}, {vr(Q,4)}, 0")
    a("s_nop 15")
    def max16(dst, src, first):
        if first:
            a(f"v_max3_f32 v{dst}, v{src}, v{src+1}, v{src+2}")
            a(f"v_max_f32 v{dst}, v{dst}, v{src+3}")
            rng = range(4, 16, 2)
        else:
            rng = range(0, 16, 2)
        for i in rng: a(f"v_max3_f32 v{dst}, v{dst}, v{src+i}, v{src+i+1}")
    max16(t0, S[0], True)
    a(f"v_add_f32 v{t0}, 0x42800000, v{t0}", "+64")
    Lrun = a.label("attn_run")
    a(f"{Lrun}:")
    a(f"v_mov_b32 v{t1}, v{t0}")
    a("s_nop 1")
    a(f"v_permlane32_swap_b32 v{t0}, v{t1}")
    a("s_nop 1")
    a(f"v_max_f32 v{t0}, v{t0}, v{t1}")
    for i in range(16): a(f"v_sub_f32 v{NM+i}, 0, v{t0}")
    for i in range(16): a(f"v_mov_b32 v{O+i}, 0")
    for i in range(8): a(f"v_mov_b32 v{S[1]+8+i}, 0")
    for i in range(4): a(f"v_mov_b32 v{Vf[1]+4+i}, 0")
    a(f"ds_read_b128 {vr(Kf[0],4)}, v{vKa}")
    a(f"ds_read_b128 {vr(Vf[0],4)}, v{vV0}")
    a(f"ds_read_b128 {vr(Kf[1],4)}, v{vKa} offset:1024")
    a(f"ds_read_b128 {vr(Vf[0]+4,4)}, v{vV1}")
    a("s_waitcnt lgkmcnt(0)")
    a(f"v_mfma_f32_32x32x16_bf16 {vr(S[0],16)}, {vr(Kf[0],4)}, {vr(Q,4)}, {vr(NM,16)}")
    a("s_mov_b32 s83, 8")
    a("s_nop 15")
    U = 8
    Lloop = a.label("attn_loop")
    a.raw(".p2align 6")
    a(f"{Lloop}:")
    for t in range(U):
        Sa = S[t % 2]; Sb = S[(t+1) % 2]
        for i in range(16):
            a(f"v_exp_f32 v{Sa+i}, v{Sa+i}")
            if i == 1:
                a(f"v_smfmac_f32_32x32x32_bf16 {vr(O,16)}, {vr(Vf[(t+1)%2]+4,4)}, {vr(Sb+8,8)}, v{vIdx}")
                a(f"ds_read_b128 {vr(Vf[(t+1)%2],4)}, v{vV0} offset:{(t+1)*VT}")
            if i == 4:
                a("s_waitcnt lgkmcnt(1)")
            if i == 5:
                a(f"v_mfma_f32_32x32x16_bf16 {vr(Sb,16)}, {vr(Kf[(t+1)%2],4)}, {vr(Q,4)}, {vr(NM,16)}")
                a(f"ds_read_b128 {vr(Kf[t%2],4)}, v{vKa} offset:{(t+2)*1024}")
            if i == 10:
                a(f"v_smfmac_f32_32x32x32_bf16 {vr(O,16)}, {vr(Vf[t%2],4)}, {vr(Sa,8)}, v{vIdx}")
                a(f"ds_read_b128 {vr(Vf[(t+1)%2]+4,4)}, v{vV1} offset:{(t+1)*VT}")
            if t == U-1 and i == 11:
                a(f"v_add_u32 v{vKa}, {U*1024}, v{vKa}")
            if t == U-1 and i == 12:
                a(f"v_add_u32 v{vV0}, {U*VT}, v{vV0}")
                a("s_sub_u32 s83, s83, 1")
            if t == U-1 and i == 13:
                a(f"v_add_u32 v{vV1}, {U*VT}, v{vV1}")
                a("s_cmp_lg_u32 s83, 0")
    a(f"s_cbranch_scc1 {Lloop}")
    a("s_nop 1")
    a(f"v_smfmac_f32_32x32x32_bf16 {vr(O,16)}, {vr(Vf[1]+4,4)}, {vr(S[1]+8,8)}, v{vIdx}")
    a(f"v_subrev_u32 v{vKa}, {64*1024}, v{vKa}")
    a(f"v_subrev_u32 v{vV0}, {64*VT}, v{vV0}")
    a(f"v_subrev_u32 v{vV1}, {64*VT}, v{vV1}")
    a("s_waitcnt lgkmcnt(0)")
    a("s_nop 12")
    Lfin = a.label("attn_fin")
    a("s_cmp_lg_u32 s82, 0")
    a(f"s_cbranch_scc1 {Lfin}")
    a(f"v_mov_b32 v{t1}, 0x71800000", "2^100")
    a(f"v_mov_b32 v{t0}, 0x207", "nan/-inf / +inf class mask (bits 0,1,2,9)")
    a(f"v_cmp_nlt_f32 s[84:85], v{O+8}, v{t1}")
    for i in range(8):
        a(f"v_cmp_class_f32 vcc, v{O+i}, v{t0}")
        a("s_or_b64 s[84:85], s[84:85], vcc")
    a("s_cmp_eq_u64 s[84:85], 0")
    a(f"s_cbranch_scc1 {Lfin}")
    a("s_mov_b32 s82, 1")
    a("s_mov_b32 s83, 64")
    a(f"v_mov_b32 v{t0}, 0xff800000")
    a(f"v_mov_b32 v{t1}, v{vKa}")
    Lm = a.label("attn_maxloop")
    a(f"{Lm}:")
    a(f"ds_read_b128 {vr(Kf[0],4)}, v{t1}")
    a(f"v_add_u32 v{t1}, 1024, v{t1}")
    a("s_waitcnt lgkmcnt(0)")
    a(f"v_mfma_f32_32x32x16_bf16 {vr(S[0],16)}, {vr(Kf[0],4)}, {vr(Q,4)}, 0")
    a("s_nop 15")
    max16(t0, S[0], False)
    a("s_sub_u32 s83, s83, 1")
    a("s_cmp_lg_u32 s83, 0")
    a(f"s_cbranch_scc1 {Lm}")
    a(f"s_branch {Lrun}")
    a(f"{Lfin}:")
    a(f"v_rcp_f32 v{t0}, v{O+8}")
    a("s_nop 0")
    for i in range(8): a(f"v_mul_f32 v{O+i}, v{O+i}, v{t0}")
    for i in range(4): a(f"v_cvt_pk_bf16_f32 v{Q+i}, v{O+2*i}, v{O+2*i+1}")
    a(f"s_add_u32 s76, s75, {WS_O}")
    a(f"buffer_store_dwordx4 {vr(Q,4)}, v{vL}, s[{R_WS}:{R_WS+3}], s76 offen{st}")
    return V.hi

def kernel2(a):
    name = "k2_kernel"
    prologue(a, name, ["WS"])
    hi = attention(a)
    a(f"L_{name}_exit:")
    a("s_endpgm")
    return name, hi, LDS_V + 66*VT

L_DA = 0; L_WO = 65536; L_RED = 131072
def phaseDE(a, ld=""):
    V = VAlloc(2)
    vL, vXe, vXo, vW = V.a(), V.a(), V.a(), V.a()
    t0, t1, t2 = V.a(), V.a(), V.a()
    Z = V.a(64); Of = V.a(64)
    a(f"v_lshlrev_b32 v{vL}, 4, v0")
    a("s_and_b32 s72, s2, 7", "x8")
    a("s_lshr_b32 s73, s2, 3", "j")
    a("s_and_b32 s74, s72, 3", "q")
    a("s_add_u32 s75, s74, 1")
    a("s_lshr_b32 s75, s75, 1", "r")
    a("s_and_b32 s76, s73, 7")
    a("s_lshl_b32 s76, s76, 5")
    a("s_cmp_eq_u32 s74, 0")
    a("s_addc_u32 s76, s76, 0", "+1 for class 0")
    a("s_cmp_eq_u32 s74, 2")
    a("s_cselect_b32 s77, 256, 0")
    a("s_add_u32 s76, s76, s77", "i0")
    a("s_lshl_b32 s76, s76, 2")
    a("s_add_u32 s76, s76, s75", "t0 = 4*i0 + r")
    a("s_lshr_b32 s77, s72, 2")
    a("s_lshl_b32 s77, s77, 2")
    a("s_lshr_b32 s78, s73, 3")
    a("s_add_u32 s77, s77, s78", "ct")
    a(f"v_lshrrev_b32 v{t0}, 3, v0")
    a(f"v_lshlrev_b32 v{vXe}, 14, v{t0}")
    a(f"v_and_b32 v{t0}, 7, v0")
    a(f"v_lshrrev_b32 v{t1}, 4, v0")
    a(f"v_xor_b32 v{t0}, v{t0}, v{t1}")
    a(f"v_lshl_add_u32 v{vXe}, v{t0}, 4, v{vXe}")
    a(f"v_xor_b32 v{vXo}, 64, v{vXe}")
    a(f"s_cmp_lt_u32 s{S_WAVE}, 4")
    a(f"s_cselect_b32 s{R_T}, s{R_CS}, s{R_SS}")
    a(f"s_cselect_b32 s{R_T+1}, s{R_CS+1}, s{R_SS+1}")
    a(f"s_mov_b32 s{R_T+2}, 8388608")
    a(f"s_mov_b32 s{R_T+3}, 0x20000")
    a("s_lshl_b32 s79, s76, 12")
    a(f"s_and_b32 s81, s{S_WAVE}, 3", "cs")
    a("s_lshl_b32 s80, s81, 8")
    a("s_add_u32 s79, s79, s80")
    a(f"s_lshl_b32 s80, s{S_WAVE}, 13")
    for cc in range(2):
        for i in range(4):
            a(f"s_add_u32 s84, s79, {i*8*16384 + cc*128}")
            a(f"s_add_u32 s85, s80, {L_DA + cc*4096 + i*1024}")
            dma(a, vXe if i % 2 == 0 else vXo, R_T, 84, m0_s=85)
    a(f"s_lshr_b32 s82, s{S_WAVE}, 2", "kh")
    a("s_lshl_b32 s83, s75, 1")
    a("s_add_u32 s83, s83, s82")
    a("s_lshl_b32 s83, s83, 5")
    a("s_lshl_b32 s84, s77, 2")
    a("s_add_u32 s83, s83, s84")
    a("s_add_u32 s83, s83, s81")
    a("s_lshl_b32 s83, s83, 14")
    a(f"s_add_u32 s83, s83, {WS_Z}")
    for ks in range(16):
        if ks and ks % 4 == 0: a("s_add_u32 s83, s83, 4096")
        a(f"buffer_load_dwordx4 {vr(Z+4*ks,4)}, v{vL}, s[{R_WS}:{R_WS+3}], s83 offen offset:{(ks%4)*1024}{ld}")
    a("s_lshl_b32 s86, s72, 2")
    a("s_and_b32 s87, s73, 3")
    a("s_add_u32 s86, s86, s87", "tau")
    a("s_lshr_b32 s87, s73, 2", "phi")
    a(f"v_lshrrev_b32 v{t0}, 2, v0")
    a(f"v_lshlrev_b32 v{vW}, 10, v{t0}")
    a(f"v_and_b32 v{t0}, 3, v0")
    a(f"v_lshl_add_u32 v{vW}, v{t0}, 4, v{vW}")
    a(f"s_lshl_b32 s88, s{S_WAVE}, 16")
    a("s_lshl_b32 s89, s87, 7")
    a("s_add_u32 s88, s88, s89")
    a(f"s_lshl_b32 s89, s{S_WAVE}, 12")
    for ns in range(2):
        for i in range(4):
            a(f"s_add_u32 s84, s88, {i*16384 + ns*64}")
            a(f"s_add_u32 s85, s89, {L_WO + ns*32768 + i*1024}")
            dma(a, vW, R_WO, 84, m0_s=85)
    a(f"s_and_b32 s90, s{S_WAVE}, 1", "ts")
    a("s_lshl_b32 s91, s86, 1")
    a("s_add_u32 s91, s91, s90", "tile")
    a("s_lshl_b32 s92, s91, 10")
    a("s_lshl_b32 s93, s82, 20")
    a("s_add_u32 s92, s92, s93")
    a(f"s_add_u32 s92, s92, {WS_O}")
    for ks in range(16):
        a(f"buffer_load_dwordx4 {vr(Of+4*ks,4)}, v{vL}, s[{R_WS}:{R_WS+3}], s92 offen{ld}")
        if ks < 15: a("s_add_u32 s92, s92, 65536")
    vA = V.a(2); accD = V.a(8); df = [[V.a(4), V.a(4)] for _ in range(2)]
    a(f"v_and_b32 v{t0}, 15, v0")
    a(f"v_lshrrev_b32 v{t1}, 1, v{t0}")
    a(f"v_lshrrev_b32 v{t2}, 4, v0")
    a(f"v_xor_b32 v{t1}, v{t1}, v{t2}")
    a(f"v_lshlrev_b32 v{t1}, 4, v{t1}")
    a(f"v_lshl_add_u32 v{t1}, v{t0}, 7, v{t1}")
    a("s_lshl_b32 s84, s82, 15")
    a(f"v_add_u32 v{vA}, s84, v{t1}")
    a(f"v_xor_b32 v{vA+1}, 64, v{vA}")
    for r in range(8): a(f"v_mov_b32 v{accD+r}, 0")
    a("s_waitcnt vmcnt(40)")
    a("s_barrier")
    def rd(ks, b):
        for rs in range(2):
            a(f"ds_read_b128 {vr(df[b][rs],4)}, v{vA+(ks&1)} offset:{L_DA + (ks>>1)*4096 + rs*2048}")
    rd(0, 0)
    for ks in range(16):
        b = ks % 2
        if ks < 15: rd(ks+1, 1-b)
        a(f"s_waitcnt vmcnt({24 + 15 - ks}) lgkmcnt({2 if ks < 15 else 0})")
        for rs in range(2):
            a(f"v_mfma_f32_16x16x32_bf16 {vr(accD+4*rs,4)}, {vr(Z+4*ks,4)}, {vr(df[b][rs],4)}, {vr(accD+4*rs,4)}")
    a(f"s_lshl_b32 s84, s{S_WAVE}, 10")
    a(f"s_add_u32 s84, s84, {L_RED}")
    a(f"v_add_u32 v{t0}, s84, v{vL}")
    a(f"v_xor_b32 v{t1}, 4096, v{t0}")
    a("s_cmp_eq_u32 s82, 0")
    a("s_cselect_b64 vcc, -1, 0")
    a("s_nop 7")
    snd, keep = df[0][0], df[0][1]
    for i in range(4):
        a(f"v_cndmask_b32 v{snd+i}, v{accD+i}, v{accD+4+i}, vcc")
        a(f"v_cndmask_b32 v{keep+i}, v{accD+4+i}, v{accD+i}, vcc")
    a(f"ds_write_b128 v{t0}, {vr(snd,4)}")
    a("s_waitcnt vmcnt(16) lgkmcnt(0)", "also Wo DMA landed")
    a("s_barrier")
    rcv = df[1][0]
    a(f"ds_read_b128 {vr(rcv,4)}, v{t1}")
    vdir, vmir = df[1][1], df[1][1]+1
    a("s_lshl_b32 s84, s82, 6")
    a("s_add_u32 s84, s84, s76", "t base")
    a(f"v_and_b32 v{t0}, 15, v0")
    a(f"v_lshl_add_u32 v{t0}, v{t0}, 2, s84", "t")
    a("s_lshl_b32 s85, s77, 6")
    a("s_lshl_b32 s93, s81, 4")
    a("s_add_u32 s85, s85, s93")
    a(f"v_lshrrev_b32 v{t1}, 4, v0")
    a(f"v_lshl_add_u32 v{t1}, v{t1}, 2, s85", "e")
    a(f"v_lshlrev_b32 v{vdir}, 11, v{t0}")
    a(f"v_lshl_add_u32 v{vdir}, v{t1}, 1, v{vdir}")
    a(f"v_sub_u32 v{t2}, 2048, v{t0}")
    a(f"v_lshlrev_b32 v{vmir}, 11, v{t2}")
    a(f"v_mov_b32 v{t2}, 1024")
    a(f"v_cmp_ne_u32 s[94:95], v{t2}, v{t0}")
    a("s_waitcnt lgkmcnt(0)")
    for i in range(4): a(f"v_add_f32 v{keep+i}, v{keep+i}, v{rcv+i}")
    a(f"v_cvt_pk_bf16_f32 v{snd}, v{keep}, v{keep+1}")
    a(f"v_cvt_pk_bf16_f32 v{snd+1}, v{keep+2}, v{keep+3}")
    a(f"buffer_store_dwordx2 {vr(snd,2)}, v{vdir}, s[{R_OUT}:{R_OUT+3}], 0 offen offset:1024")
    a("s_mov_b64 exec, s[94:95]")
    for i in range(4):
        a(f"v_sub_u32 v{t2}, {512-i}, v{t1}")
        a(f"v_and_b32 v{t2}, 511, v{t2}")
        a(f"v_lshl_add_u32 v{rcv+i}, v{t2}, 1, v{vmir}")
        if i % 2 == 0:
            a(f"buffer_store_short v{snd+i//2}, v{rcv+i}, s[{R_OUT}:{R_OUT+3}], 0 offen offset:1024")
        else:
            a(f"buffer_store_short_d16_hi v{snd+i//2}, v{rcv+i}, s[{R_OUT}:{R_OUT+3}], 0 offen offset:1024")
    a("s_mov_b64 exec, -1")
    Lskip = a.label("row0_skip")
    a("s_and_b32 s84, s73, 7")
    a("s_or_b32 s84, s84, s74")
    a(f"s_or_b32 s84, s84, s{S_WAVE}")
    a("s_cmp_lg_u32 s84, 0")
    a(f"s_cbranch_scc1 {Lskip}")
    a(f"v_and_b32 v{t0}, 15, v0")
    a(f"v_lshlrev_b32 v{t0}, 4, v{t0}")
    a(f"v_lshrrev_b32 v{t1}, 4, v0")
    a(f"v_lshl_add_u32 v{t0}, v{t1}, 14, v{t0}")
    a("s_lshl_b32 s84, s77, 8")
    a(f"s_add_u32 s84, s84, {WS_P}")
    for p in range(8):
        if p == 2 or p == 4 or p == 6: a("s_add_u32 s84, s84, 4096")
        a(f"buffer_load_dwordx4 {vr(Z+4*p,4)}, v{t0}, s[{R_WS}:{R_WS+3}], s84 offen offset:{(p%2)*2048}{ld}")
    a("s_waitcnt vmcnt(0)")
    for p in range(1, 8):
        for i in range(4): a(f"v_add_f32 v{Z+i}, v{Z+i}, v{Z+4*p+i}")
    for sw in ("v_permlane32_swap_b32", "v_permlane16_swap_b32"):
        for i in range(4): a(f"v_mov_b32 v{Z+4+i}, v{Z+i}")
        a("s_nop 1")
        for i in range(4): a(f"{sw} v{Z+i}, v{Z+4+i}")
        a("s_nop 1")
        for i in range(4): a(f"v_add_f32 v{Z+i}, v{Z+i}, v{Z+4+i}")
    a(f"v_cvt_pk_bf16_f32 v{Z+8}, v{Z}, v{Z+1}")
    a(f"v_cvt_pk_bf16_f32 v{Z+9}, v{Z+2}, v{Z+3}")
    a(f"v_lshlrev_b32 v{t0}, 3, v0")
    a("s_lshl_b32 s84, s77, 7")
    a("s_mov_b64 exec, 0xffff")
    a(f"buffer_store_dwordx2 {vr(Z+8,2)}, v{t0}, s[{R_OUT}:{R_OUT+3}], s84 offen offset:1024")
    a("s_mov_b64 exec, -1")
    a(f"{Lskip}:")
    a.c("---- phase E")
    vWa = V.a(); accE = V.a(16); wfr = [V.a(4), V.a(4)]
    a(f"v_lshrrev_b32 v{t0}, 5, v0")
    a(f"v_lshlrev_b32 v{t1}, 8, v{t0}", "4h*64")
    a(f"v_bfe_u32 v{t0}, v0, 2, 2")
    a(f"v_lshl_add_u32 v{t1}, v{t0}, 6, v{t1}")
    a(f"v_bfe_u32 v{t0}, v0, 4, 1")
    a(f"v_lshl_add_u32 v{t1}, v{t0}, 5, v{t1}")
    a(f"v_and_b32 v{t0}, 3, v0")
    a(f"v_lshl_add_u32 v{t1}, v{t0}, 3, v{t1}")
    a(f"s_bfe_u32 s93, s{S_WAVE}, 0x10001", "ns")
    a("s_lshl_b32 s84, s93, 15")
    a("s_lshl_b32 s85, s82, 14")
    a("s_add_u32 s84, s84, s85")
    a(f"s_add_u32 s84, s84, {L_WO}")
    a(f"v_add_u32 v{vWa}, s84, v{t1}")
    for r in range(16): a(f"v_mov_b32 v{accE+r}, 0")
    def rdw(ks, b):
        a(f"ds_read_b64_tr_b16 {vr(wfr[b],2)}, v{vWa} offset:{ks*1024}")
        a(f"ds_read_b64_tr_b16 {vr(wfr[b]+2,2)}, v{vWa} offset:{ks*1024+512}")
    rdw(0, 0)
    a("s_waitcnt vmcnt(0)")
    for ks in range(16):
        b = ks % 2
        if ks < 15: rdw(ks+1, 1-b)
        a(f"s_waitcnt lgkmcnt({2 if ks < 15 else 0})")
        a(f"v_mfma_f32_32x32x16_bf16 {vr(accE,16)}, {vr(wfr[b],4)}, {vr(Of+4*ks,4)}, {vr(accE,16)}")
    a(f"s_lshl_b32 s84, s{S_WAVE}, 11")
    a(f"v_add_u32 v{t0}, s84, v{vL}")
    a(f"v_xor_b32 v{t1}, 8192, v{t0}")
    a("s_cmp_eq_u32 s82, 0")
    a("s_cselect_b64 vcc, -1, 0")
    a("s_nop 9")
    snd, keep, rcv = Z, Z+8, Z+16
    for i in range(8):
        a(f"v_cndmask_b32 v{snd+i}, v{accE+i}, v{accE+8+i}, vcc")
        a(f"v_cndmask_b32 v{keep+i}, v{accE+8+i}, v{accE+i}, vcc")
    a(f"ds_write_b128 v{t0}, {vr(snd,4)}")
    a(f"ds_write_b128 v{t0}, {vr(snd+4,4)} offset:1024")
    a("s_waitcnt lgkmcnt(0)")
    a("s_barrier")
    a(f"ds_read_b128 {vr(rcv,4)}, v{t1}")
    a(f"ds_read_b128 {vr(rcv+4,4)}, v{t1} offset:1024")
    a(f"v_and_b32 v{t0}, 31, v0")
    a(f"v_lshlrev_b32 v{t0}, 11, v{t0}")
    a(f"v_lshrrev_b32 v{t2}, 5, v0")
    a(f"v_lshl_add_u32 v{t0}, v{t2}, 4, v{t0}")
    a("s_lshl_b32 s84, s91, 16")
    a("s_lshl_b32 s85, s87, 7")
    a("s_add_u32 s84, s84, s85")
    a("s_lshl_b32 s85, s93, 6")
    a("s_add_u32 s84, s84, s85")
    a("s_lshl_b32 s85, s82, 5")
    a("s_add_u32 s84, s84, s85")
    a("s_waitcnt lgkmcnt(0)")
    for i in range(8): a(f"v_add_f32 v{keep+i}, v{keep+i}, v{rcv+i}")
    for i in range(4): a(f"v_cvt_pk_bf16_f32 v{snd+i}, v{keep+2*i}, v{keep+2*i+1}")
    a("s_nop 1")
    a(f"v_permlane32_swap_b32 v{snd}, v{snd+2}")
    a(f"v_permlane32_swap_b32 v{snd+1}, v{snd+3}")
    a("s_nop 1")
    a(f"buffer_store_dwordx4 {vr(snd,4)}, v{t0}, s[{R_OUT}:{R_OUT+3}], s84 offen")
    return V.hi

def kernel3(a):
    name = "k3_kernel"
    prologue(a, name, ["WO","CS","SS","OUT","WS"])
    hi = phaseDE(a)
    a(f"L_{name}_exit:")
    a("s_endpgm")
    return name, hi, L_RED + 8192

HEADER = open("cdna_kernels/%s.s.ref" % NAME).read().split("; Override launch")[0]

def build(path):
    a = Asm()
    ks = [kernel1(a), kernel2(a), kernel3(a)]
    out = HEADER
    for name, hi, lds in ks:
        out += f"; @launch kernel={name} grid=(256,1,1) block=(512,1,1) lds={lds}\n"
    out += '.amdgcn_target "amdgcn-amd-amdhsa--gfx950"\n.text\n'
    out += a.text()
    out += '.section .rodata,"a"\n'
    for name, hi, lds in ks:
        nv = (hi + 7) // 8 * 8
        out += f""".p2align 6
.amdhsa_kernel {name}
  .amdhsa_next_free_vgpr {nv}
  .amdhsa_next_free_sgpr 102
  .amdhsa_accum_offset {nv}
  .amdhsa_group_segment_fixed_size 0
  .amdhsa_kernarg_size 88
  .amdhsa_user_sgpr_count 2
  .amdhsa_user_sgpr_kernarg_segment_ptr 1
  .amdhsa_system_sgpr_workgroup_id_x 1
.end_amdhsa_kernel
"""
        print(name, "vgpr", hi, "lds", lds, file=sys.stderr)
    open(path, "w").write(out)

if __name__ == "__main__":
    build(sys.argv[1] if len(sys.argv) > 1 else f"cdna_kernels/{NAME}.s")
```
